```python
import torch

def _softmax(x, axis=-1):
    return torch.softmax(x, dim=axis)
def _gelu(x):
    return torch.nn.functional.gelu(x, approximate="tanh")
def _silu(x):
    return torch.nn.functional.silu(x)
def _sigmoid(x):
    return torch.sigmoid(x)
def _layernorm(x, axis=-1, eps=1e-5):
    m = x.mean(dim=axis, keepdim=True)
    v = x.var(dim=axis, keepdim=True, unbiased=False)
    return (x - m) / torch.sqrt(v + eps)
def _scatter_add(tgt, idx, src, axis=0):
    return tgt.clone().index_add_(axis, idx, src)
def _segment_sum(src, seg, n):
    out = torch.zeros((n,) + src.shape[1:], dtype=src.dtype)
    return out.index_add_(0, seg, src)
def _pad(x, pw):
    flat = tuple(v for pair in reversed(pw) for v in pair)
    return torch.nn.functional.pad(x, flat)

kernel_name = 'parallel_sum__spectral_gfnet__glu_gated_bilinear__prompt'

def setup_inputs():

    _w = (lambda a: (lambda t: t.to(torch.bfloat16) if t.is_floating_point() else t)(torch.as_tensor(a)))
    def _A_setup():
        B, S, D = 1, 2048, 576
        Df = D // 2 + 1
        return {
            "x": _w((lambda *s: torch.randn(*s, dtype=torch.bfloat16) * 0.05)(B, S, D)),
            "w_r": _w((lambda *s: torch.randn(*s, dtype=torch.bfloat16) * 0.4)(S, Df) * 0.02),
            "w_i": _w((lambda *s: torch.randn(*s, dtype=torch.bfloat16) * 0.4)(S, Df) * 0.02),
        }
    _A_in = _A_setup()

    def _B_setup():
        B, S, D, F = 1, 2048, 576, 4608
        return {
            "x": _w((lambda *s: torch.randn(*s, dtype=torch.bfloat16) * 0.05)(B, S, D)),
            "w_gate": _w((lambda *s: torch.randn(*s, dtype=torch.bfloat16) * 0.2)(D, F) * (D ** -0.5)),
            "w_up": _w((lambda *s: torch.randn(*s, dtype=torch.bfloat16) * 0.2)(D, F) * (D ** -0.5)),
            "w_down": _w((lambda *s: torch.randn(*s, dtype=torch.bfloat16) * 0.2)(F, D) * (F ** -0.5)),
        }
    _B_in = _B_setup()

    return {
        "A_x": _A_in["x"],
        "A_w_r": _A_in["w_r"],
        "A_w_i": _A_in["w_i"],
        "B_x": _B_in["x"],
        "B_w_gate": _B_in["w_gate"],
        "B_w_up": _B_in["w_up"],
        "B_w_down": _B_in["w_down"],
    }

def reference(A_x, A_w_r, A_w_i, B_x, B_w_gate, B_w_up, B_w_down):
    def _A_ref(x, w_r, w_i):
        B, S, D = x.shape
        X = (lambda x, axes=(-2,-1): torch.fft.rfft2(x.float(), dim=axes))(x, axes=(-2, -1))
        W = w_r + 1j * w_i
        X = X * W
        y = (lambda x, s, axes=(-2,-1): torch.fft.irfft2(x, s=s, dim=axes).to(torch.bfloat16))(X, (S, D), axes=(-2, -1))
        return y

    def _B_ref(x, w_gate, w_up, w_down):
        g = torch.einsum("bsd,df->bsf", x, w_gate)
        u = torch.einsum("bsd,df->bsf", x, w_up)
        h = g * u
        return torch.einsum("bsf,fd->bsd", h, w_down)

    x = A_x
    xn = _layernorm(x, axis=-1)
    return x + _A_ref(xn, A_w_r, A_w_i) + _B_ref(xn, B_w_gate, B_w_up, B_w_down)
```

```python
import re

class Ins:
    __slots__=("text","kind","tag","wait","note")
    def __init__(self, text, kind=None, tag=None, wait=None):
        self.text=text; self.kind=kind or classify(text); self.tag=tag; self.wait=wait; self.note=None
    def __repr__(self): return self.text

def classify(t):
    op=t.split()[0]
    if op.endswith(":"): return "label"
    if op.startswith("v_mfma"): return "mfma"
    if op.startswith("ds_"): return "ds"
    if op.startswith("buffer_") or op.startswith("global_"): return "vm"
    if op.startswith("s_load") or op in("s_memtime","s_memrealtime"): return "smem"
    if op=="s_waitcnt": return "wait"
    if op=="s_barrier": return "barrier"
    if op.startswith("s_"): return "salu"
    if op.startswith("v_"): return "valu"
    if op.startswith(".") or op.startswith(";"): return "dir"
    raise ValueError("classify: "+t)

_reg_re=re.compile(r'\b([vas])(\d+)\b|\b([vas])\[(\d+):(\d+)\]')
def regs_of(opnd):
    out=[]
    for m in _reg_re.finditer(opnd):
        if m.group(1): out.append((m.group(1),int(m.group(2))))
        else:
            for i in range(int(m.group(4)),int(m.group(5))+1): out.append((m.group(3),i))
    if re.search(r'\bvcc\b',opnd): out.append(("s","vcc"))
    if re.search(r'\bm0\b',opnd): out.append(("s","m0"))
    if re.search(r'\bexec\b',opnd): out.append(("s","exec"))
    return out

def split_ops(t):
    parts=t.split(None,1)
    op=parts[0]
    if len(parts)==1: return op,[]
    rest=parts[1]
    ops=[]; depth=0; cur=""
    for ch in rest:
        if ch=="[": depth+=1
        if ch=="]": depth-=1
        if ch=="," and depth==0: ops.append(cur.strip()); cur=""
        else: cur+=ch
    ops.append(cur.strip())
    return op,ops

TRANS=("v_exp_f32","v_log_f32","v_rcp_f32","v_rsq_f32","v_sqrt_f32","v_sin_f32","v_cos_f32","v_rcp_iflag_f32")
def rw(ins):
    t=ins.text.split(";")[0].strip()
    op,ops=split_ops(t)
    k=ins.kind
    if k=="vm_opt": k="vm"
    if k=="opt": k=classify(ins.text)
    W=[];R=[]
    base=op.replace("_e32","").replace("_e64","").replace("_dpp","").replace("_sdwa","")
    if k=="mfma":
        W=regs_of(ops[0]); R=regs_of(ops[1])+regs_of(ops[2])+regs_of(ops[3])
    elif k=="valu":
        if base.startswith("v_cmp"):
            W=regs_of(ops[0]); R=sum((regs_of(o) for o in ops[1:]),[])
        elif base in("v_permlane16_swap_b32","v_permlane32_swap_b32"):
            W=regs_of(ops[0])+regs_of(ops[1]); R=list(W)
        elif base in ("v_add_co_u32","v_sub_co_u32","v_addc_co_u32"):
            W=regs_of(ops[0])+regs_of(ops[1]); R=sum((regs_of(o) for o in ops[2:]),[])
        elif base in ("v_fmac_f32","v_dot2c_f32_bf16","v_pk_fmac_f16"):
            W=regs_of(ops[0]); R=sum((regs_of(o) for o in ops),[])
        elif base=="v_nop": pass
        else:
            W=regs_of(ops[0]); R=sum((regs_of(o) for o in ops[1:]),[])
            if base=="v_cndmask_b32" and len(ops)==3: R.append(("s","vcc"))
            if "_dpp" in op or "d16" in op: R+=W
    elif k=="ds":
        if base.startswith("ds_read") or base.startswith("ds_bpermute") or base.startswith("ds_swizzle"):
            W=regs_of(ops[0]); R=sum((regs_of(o) for o in ops[1:]),[])
            if "d16" in base: R+=W
        else:
            R=sum((regs_of(o) for o in ops),[])
    elif k=="vm":
        if "store" in base or ("atomic" in base and "sc0" not in t):
            R=sum((regs_of(o) for o in ops),[])
        elif re.search(r'\blds\b',t) or "load_lds" in base:
            R=sum((regs_of(o) for o in ops),[])+[("s","m0")]
        else:
            W=regs_of(ops[0]); R=sum((regs_of(o) for o in ops[1:]),[])
    elif k=="smem":
        W=regs_of(ops[0]); R=sum((regs_of(o) for o in ops[1:]),[])
    elif k=="salu":
        if base.startswith("s_cmp") or base.startswith("s_cbranch") or base in("s_branch","s_nop","s_sleep","s_setprio","s_endpgm","s_setpc_b64"):
            R=sum((regs_of(o) for o in ops),[])
        else:
            W=regs_of(ops[0]) if ops else []; R=sum((regs_of(o) for o in ops[1:]),[])
            if "saveexec" in base: W.append(("s","exec")); R.append(("s","exec"))
    return W,R

def mfma_passes(op):
    if "16x16x32" in op: return 4
    if "32x32x16" in op: return 8
    raise ValueError(op)

class Prog:
    def __init__(self):
        self.L=[]
    def I(self, text, tag=None, kind=None):
        for line in text.split("\n"):
            line=line.strip()
            if not line: continue
            ins=Ins(line, kind=kind if kind else None, tag=tag)
            self.L.append(ins)
        return self.L[-1] if self.L else None
    def add(self, ins):
        self.L.append(ins); return ins
    def label(self, name): self.L.append(Ins(name+":","label"))
    def wl(self, *tags, all=False):
        self.L.append(mk_wl(*tags, all=all))
    def wv(self, *tags, all=False):
        self.L.append(mk_wv(*tags, all=all))
    def text(self):
        out=[]
        for i in self.L:
            if i.kind=="label": out.append(i.text)
            else: out.append("    "+i.text)
        return "\n".join(out)+"\n"

def mk_wl(*tags, all=False):
    i=Ins("s_waitcnt lgkmcnt(?)","wait"); i.wait=("l",set(tags),all); return i
def mk_wv(*tags, all=False):
    i=Ins("s_waitcnt vmcnt(?)","wait"); i.wait=("v",set(tags),all); return i

def resolve_waits(L, drop_redundant=True):
    lq=[]; vq=[]
    out=[]
    for ins in L:
        if ins.kind=="ds": lq.append(ins.tag)
        elif ins.kind=="smem": lq.append(("smem",ins.tag))
        elif ins.kind=="vm": vq.append(ins.tag)
        elif ins.kind=="wait":
            if ins.wait is None:
                m=re.search(r'lgkmcnt\((\d+)\)',ins.text)
                if m:
                    n=int(m.group(1)); lq=lq[len(lq)-n:] if n<len(lq) else lq
                    if n==0: lq=[]
                m=re.search(r'vmcnt\((\d+)\)',ins.text)
                if m:
                    n=int(m.group(1)); vq=vq[len(vq)-n:] if n<len(vq) else vq
                    if n==0: vq=[]
            else:
                which,tags,al=ins.wait
                q = lq if which=="l" else vq
                if al: n=0
                else:
                    last=-1
                    for idx,t in enumerate(q):
                        if t in tags: last=idx
                    if last<0:
                        if drop_redundant:
                            continue
                        n=len(q)
                    else: n=len(q)-1-last
                if which=="l":
                    if any(isinstance(t,tuple) and t and t[0]=="smem" for t in q): n=0
                    assert n<=15, ("lgkmcnt too large",n,tags)
                    ins.text=f"s_waitcnt lgkmcnt({n})"
                    lq=q[len(q)-n:] if n>0 else []
                else:
                    assert n<=63, ("vmcnt too large",n,tags)
                    ins.text=f"s_waitcnt vmcnt({n})"
                    vq=q[len(q)-n:] if n>0 else []
        out.append(ins)
        if len(vq)>63: raise AssertionError("more than 63 vm ops outstanding")
    return out

def check_hazards(L, name=""):
    probs=[]
    hist=[]
    seq=[i for i in L if i.kind not in("label","dir")]
    info=[]
    for i in seq:
        W,R=rw(i); info.append((i,set(W),set(R)))
    def states(a,b):
        n=0
        for j in range(a+1,b):
            t=info[j][0].text
            if t.startswith("s_nop"): n+=int(t.split()[1],0)+1
            else: n+=1
        return n
    N=len(info)
    for b in range(N):
        ib,Wb,Rb=info[b]
        opb=ib.text.split()[0]
        for a in range(b-1,max(-1,b-24),-1):
            ia,Wa,Ra=info[a]
            opa=ia.text.split()[0]
            need=0; why=""
            vW={r for r in Wa if r[0] in "va"}; sW={r for r in Wa if r[0]=="s"}
            if ia.kind=="valu":
                if ib.kind=="mfma" and vW&Rb: need,why=2,"valu->mfma"
                if opb.startswith("v_readfirstlane") or opb.startswith("v_readlane"):
                    if vW&Rb: need,why=1,"valu->readlane"
                if opb.startswith("v_permlane") and vW&(Rb|Wb): need,why=2,"valu->permlane"
                if "_dpp" in ib.text.split()[0] or " row_" in ib.text or "quad_perm" in ib.text:
                    if vW&Rb: need,why=2,"valu->dpp"
                if ib.kind=="vm" and sW&Rb: need,why=5,"valu sgpr->vmem"
                if ib.kind=="valu" and sW&Rb: need,why=max(need,2),"valu sgpr->valu"
                if any(opa.startswith(t) for t in TRANS) and ib.kind in("valu","mfma","vm","ds") and vW&Rb and not any(opb.startswith(t) for t in TRANS):
                    need,why=max(need,1),"trans->use"
                if opa.startswith("v_dot2") and vW&(Rb|Wb) and ib.kind in ("valu","mfma","vm","ds"):
                    if opb.split("_e")[0]==opa.split("_e")[0]:
                        op,ops=split_ops(ib.text)
                        ab=set(regs_of(ops[1])+regs_of(ops[2]))
                        if vW&ab: need,why=3,"dot->dot ab"
                    else: need,why=max(need,3),"dot->other"
                if ("s","exec") in Wa and ib.kind=="mfma": need,why=4,"exec->mfma"
            if ia.kind=="salu" and ("s","m0") in Wa and ib.kind in("vm","vm_opt") and ("s","m0") in Rb: need,why=1,"m0->dma"
            if ia.kind=="mfma":
                p=mfma_passes(opa); nd={4:8,8:12}[p]
                if ib.kind=="mfma":
                    op,ops=split_ops(ib.text)
                    D=set(regs_of(ops[0])); A=set(regs_of(ops[1])+regs_of(ops[2])); C=set(regs_of(ops[3]))
                    if vW&A: need,why=nd,"mfma->mfma ab"
                    elif vW&C and (vW!=C or mfma_passes(opb)!=p): need,why={4:6,8:10}[p],"mfma->mfma c overlap"
                    elif vW&D and not (vW&C): need,why={4:6,8:10}[p],"mfma->mfma waw"
                elif ib.kind in("valu","vm","ds") and vW&(Rb|Wb): need,why=nd,"mfma->valu/mem"
                if ib.kind=="valu":
                    op,ops=split_ops(ia.text); C=set(regs_of(ops[3]))
                    if C&Wb: need,why=max(need,{4:3,8:7}[p]),"mfma srcC war"
            if ia.kind=="vm" and ("store" in opa) and ("x4" in opa or "x3" in opa) and ib.kind in("valu",):
                op,ops=split_ops(ia.text); data=set(regs_of(ops[0] if opa.startswith("buffer") else ops[1]))
                if data&Wb: need,why=2,"store data war"
            if need:
                st=states(a,b)
                if st<need: probs.append(f"{name}: {why} need {need} have {st}: [{ia.text}] -> [{ib.text}]")
    return probs

def schedule(anchors, fixed, streams, cap, ok=None):
    out=[]
    pos=[0]*len(streams); pend=[[] for _ in streams]
    for g,a in enumerate(anchors):
        out.append(a)
        items=list(fixed.get(g,[]))
        n=len(items)
        out+=items
        progress=True
        while n<cap and progress:
            progress=False
            for s in range(len(streams)):
                if n>=cap: break
                if pend[s] and (ok is None or ok(pend[s][0],g)):
                    out.append(pend[s].pop(0)); n+=1; progress=True; continue
                if pos[s]<len(streams[s]):
                    ins,e=streams[s][pos[s]]
                    if e>g: continue
                    if ins.kind=="vm" and ok is not None and not ok(ins,g):
                        if len(pend[s])>=1: continue
                        pend[s].append(ins); pos[s]+=1; progress=True; continue
                    out.append(ins); pos[s]+=1; n+=1; progress=True
    left=[]
    for s in range(len(streams)): left+= pend[s]+[x[0] for x in streams[s][pos[s]:]]
    return out,left
```

```python
from asmlib import *
WS_H    = 0
WS_Z    = 0x1200000
WS_WT   = 0x1440000
WS_IDFT = 0x1690000
WS_Y    = 0x1740000
WS_P    = 0x19A0000
WS_DBG  = 0x2400000
WS_SIZE = 0x10000000
X_BYTES = 2048*576*2
WG_BYTES = 576*4608*2
WD_BYTES = 4608*576*2
WF_BYTES = 2048*289*2

def srd(p, base, lo, hi, size):
    p.I(f"s_mov_b32 s{base}, s{lo}\ns_mov_b32 s{base+1}, s{hi}\ns_mov_b32 s{base+2}, {size}\ns_mov_b32 s{base+3}, 0x00020000")

def kernel_desc(name, vgpr=512, accum=256, sgpr=102):
    return f""".p2align 6
.amdhsa_kernel {name}
  .amdhsa_next_free_vgpr {vgpr}
  .amdhsa_next_free_sgpr {sgpr}
  .amdhsa_accum_offset {accum}
  .amdhsa_group_segment_fixed_size 0
  .amdhsa_kernarg_size 80
  .amdhsa_user_sgpr_count 2
  .amdhsa_user_sgpr_kernarg_segment_ptr 1
  .amdhsa_system_sgpr_workgroup_id_x 1
.end_amdhsa_kernel
"""

class Stamps:
    def __init__(self, first_sgpr, enabled, tmp=94):
        self.base=first_sgpr; self.n=0; self.enabled=enabled; self.names=[]; self.tmp=tmp
    def stamp(self, p, name):
        if not self.enabled: return
        r=self.base+2*self.n; self.n+=1; self.names.append(name); t=self.tmp
        assert r+1<t
        p.I(f"s_memrealtime s[{t}:{t+1}]", tag="stamp")
        p.I("s_waitcnt lgkmcnt(0)")
        p.I(f"s_mov_b32 s{r}, s{t}")
        p.I(f"s_memtime s[{t}:{t+1}]", tag="stamp")
        p.I("s_waitcnt lgkmcnt(0)")
        p.I(f"s_mov_b32 s{r+1}, s{t}")
    def store(self, p, srd_ws, wave_index_setup, vtmp, area):
        if not self.enabled: return
        p.I(wave_index_setup)
        p.I(f"s_lshl_b32 s45, s45, 7\ns_add_u32 s45, s45, {WS_DBG+area}")
        p.I(f"v_mov_b32 v{vtmp}, 0")
        for i in range(2*self.n):
            p.I(f"v_mov_b32 v{vtmp+1}, s{self.base+i}")
            p.I(f"buffer_store_dword v{vtmp+1}, v{vtmp}, s[{srd_ws}:{srd_ws+3}], s45 offen offset:{4*i}")
            p.I("s_nop 1")
```

```python
from common import *

import struct
def fhex(x): return hex(struct.unpack('<I',struct.pack('<f',x))[0])
F1SC=fhex(1.0/(576*2048)); F2SC=fhex(2.0/(576*2048))
NSLOT=7; SLOT=12288
LDS_DFTA=NSLOT*SLOT
LDS_DFTB=LDS_DFTA+36864
XB0=2*SLOT
STORE_UU=17
PD=6
RING0=48; NRING=8
XF0=112
def XF(kk,rb): r=XF0+(kk*2+rb)*4; return f"v[{r}:{r+3}]", r
def ring(U): r=RING0+4*(U%NRING); return r
def acc(set_,t,mat,rb): return set_*96+((t*2+mat)*2+rb)*4
DACC=192
def dacc(ab,part,rb): return DACC+((ab*2+part)*2+rb)*4
S_W=16;S_CG=17;S_RT=18;S_ROT=19;S_SOFFW=20;S_M0W=38;S_XBASE=39;S_XC=40;S_T0=41;S_ONES=42;S_HB=43;S_ZB=44
S_T1=45;S_T2=46;S_T3=47;S_XLDS=60;S_GKK=58;S_GDST=59;S_HT=61;S_ZB2=62;S_HT2=63;S_WJ=92
V_L=0;V_VX=16;V_VW=20;V_TRE=23;V_TRO=24;V_TREH=25;V_TROH=26;V_XR0=27;V_XR1=28;V_L16=29
V_R2=30;V_RSTD=32;V_FS=34;V_PHI=35;V_Q8=36;V_DA=37;V_DB=46;V_VZ=47
V_S=38
V_T=80

def x_chunk_issue(p,i):
    p.I(f"s_lshl_b32 s{S_T0}, s{S_XC}, 7")
    p.I(f"s_add_u32 s{S_T0}, s{S_T0}, s{S_XBASE}")
    p.I(f"s_add_u32 m0, s{S_XLDS}, {(i%3)*4096}")
    p.I(f"s_add_u32 s{S_XC}, s{S_XC}, 1")
    for j in range(4):
        p.I(f"buffer_load_dwordx4 v{V_VX+j}, s[4:7], s{S_T0} offen offset:{j*1024} lds", tag=("x",i))
    p.I(f"s_cmp_eq_u32 s{S_XC}, 9\ns_cselect_b32 s{S_XC}, 0, s{S_XC}")

def w_stage_ins(st):
    slot=st%NSLOT; i=st%18
    L=[Ins(f"s_add_u32 m0, s{S_M0W}, {slot*SLOT}")]
    for j in range(3):
        L.append(Ins(f"buffer_load_dwordx4 v{V_VW+j}, s[8:11], s{S_SOFFW+i} offen offset:{j*1024} lds", tag=("w",st)))
    return L

def srd_advance():
    return [Ins("s_add_u32 s8, s8, 192"),Ins("s_addc_u32 s9, s9, 0"),Ins("s_sub_u32 s10, s10, 192")]

def gen_tile(p, region_sgpr_ready=True):
    A=V_T; B=V_T+8; PK=V_T+16; AD=V_T+20; K1=V_T+21; K32=V_T+22; T=V_T+24
    p.I(f"""s_lshl_b32 s{S_T1}, s{S_ROT}, 1
s_add_u32 s{S_T1}, s{S_T1}, s{S_GKK}
s_sub_u32 s{S_T2}, s{S_T1}, 18
s_cmp_ge_u32 s{S_T1}, 18
s_cselect_b32 s{S_T1}, s{S_T2}, s{S_T1}
s_lshl_b32 s{S_T1}, s{S_T1}, 5
s_sub_u32 s{S_T1}, s{S_T1}, 288
v_add_u32 v{T}, s{S_T1}, v{V_Q8}
v_cvt_f32_i32 v{T}, v{T}
v_fma_f32 v{T}, v{T}, v{V_FS}, v{V_PHI}
v_add_f32 v{T+1}, v{T}, v{V_FS}
v_mov_b32 v{T+4}, 0x42000000
v_mul_f32 v{T+4}, v{T+4}, v{V_FS}
v_add_f32 v{T+2}, v{T}, v{T+4}
v_add_f32 v{T+3}, v{T+2}, v{V_FS}
v_cos_f32 v{K1}, v{V_FS}
v_cos_f32 v{K32}, v{T+4}
v_cos_f32 v{A}, v{T}
v_cos_f32 v{A+1}, v{T+1}
v_cos_f32 v{B}, v{T+2}
v_cos_f32 v{B+1}, v{T+3}
v_add_u32 v{AD}, s{S_GDST}, v{V_L16}
v_add_f32 v{K1}, v{K1}, v{K1}
v_add_f32 v{K32}, v{K32}, v{K32}""")
    for X in (A,B):
        for j in range(2,8): p.I(f"v_fma_f32 v{X+j}, v{K1}, v{X+j-1}, -v{X+j-2}")
    def emit(X,i):
        for j in range(4): p.I(f"v_cvt_pk_bf16_f32 v{PK+j}, v{X+2*j}, v{X+2*j+1}")
        p.I(f"ds_write_b128 v{AD}, v[{PK}:{PK+3}] offset:{i*2048}")
    emit(A,0); emit(B,1)
    cur,prev=B,A
    for i in range(2,9):
        for j in range(8): p.I(f"v_fma_f32 v{prev+j}, v{K32}, v{cur+j}, -v{prev+j}")
        cur,prev=prev,cur
        emit(cur,i)

def gen_params(p, tau_sgpr, region):
    t=V_T
    p.I(f"""v_and_b32 v{t}, 15, v{V_L}
s_lshl_b32 s{S_T1}, s{tau_sgpr}, 4
v_add_u32 v{t+1}, s{S_T1}, v{t}
s_and_b32 s{S_T2}, s{S_W}, 1
s_cmp_eq_u32 s{S_T2}, 1
s_cselect_b32 s{S_T3}, 0x3e800000, 0
s_cselect_b32 s{S_T1}, 0, 1
v_and_b32 v{t+2}, 1, v{t+1}
v_cvt_f32_u32 v{t+2}, v{t+2}
v_mul_f32 v{t+2}, 0.5, v{t+2}
v_add_f32 v{V_PHI}, s{S_T3}, v{t+2}
v_or_b32 v{t+3}, s{S_T1}, v{t+1}
v_mov_b32 v{t+4}, 288
v_cmp_eq_u32 vcc, 0, v{t+3}
v_mov_b32 v{t+5}, 0
s_nop 0
v_cndmask_b32 v{t+1}, v{t+1}, v{t+4}, vcc
v_cndmask_b32 v{V_PHI}, v{V_PHI}, v{t+5}, vcc
v_cvt_f32_u32 v{t+1}, v{t+1}
v_mul_f32 v{V_FS}, 0x3ae38e39, v{t+1}
s_lshr_b32 s{S_GKK}, s{S_W}, 1
s_mul_i32 s{S_GKK}, s{S_GKK}, 9
s_lshl_b32 s{S_GDST}, s{S_GKK}, 1
s_add_u32 s{S_GDST}, s{S_GDST}, s{S_T2}
s_lshl_b32 s{S_GDST}, s{S_GDST}, 10
s_add_u32 s{S_GDST}, s{S_GDST}, {region}""")

def idft_job(p):
    T=V_T
    p.I(f"""s_cmp_lt_u32 s{S_CG}, 2
s_cbranch_scc1 L1_NOIDFT
s_sub_u32 s{S_T1}, s{S_CG}, 2
s_lshl_b32 s{S_T1}, s{S_T1}, 4
s_add_u32 s{S_T1}, s{S_T1}, s{S_RT}
s_lshl_b32 s{S_T1}, s{S_T1}, 2
s_add_u32 s{S_T1}, s{S_T1}, s{S_W}
s_cmp_ge_u32 s{S_T1}, 684
s_cbranch_scc1 L1_NOIDFT
s_mul_i32 s{S_T2}, s{S_T1}, 1821
s_lshr_b32 s{S_T2}, s{S_T2}, 16
s_mul_i32 s{S_T3}, s{S_T2}, 36
s_sub_u32 s{S_T3}, s{S_T1}, s{S_T3}
s_lshl_b32 s{S_T1}, s{S_T1}, 10
s_add_u32 s{S_T1}, s{S_T1}, {WS_IDFT}
s_lshl_b32 s{S_T3}, s{S_T3}, 4
s_sub_u32 s{S_T3}, s{S_T3}, 288
v_and_b32 v{T}, 15, v{V_L}
v_add_u32 v{T}, s{S_T3}, v{T}
v_cvt_f32_i32 v{T}, v{T}
v_mul_f32 v{T}, 0x3ae38e39, v{T}
s_lshl_b32 s{S_T3}, s{S_T2}, 4
v_lshrrev_b32 v{T+1}, 1, v{V_Q8}
v_add_u32 v{T+2}, s{S_T3}, v{T+1}
v_cvt_f32_u32 v{T+3}, v{T+2}
v_mul_f32 v{T+4}, v{T+3}, v{T}
v_add_f32 v{T+5}, v{T+4}, v{T}
v_add_f32 v{T+6}, v{T+5}, v{T}
v_add_f32 v{T+7}, v{T+6}, v{T}
v_add_f32 v{T+5}, 0.5, v{T+5}
v_add_f32 v{T+7}, 0.5, v{T+7}
s_cmp_eq_u32 s{S_T2}, 18
s_cselect_b32 s{S_T3}, 0, {F2SC}
v_mov_b32 v{T+16}, s{S_T3}
v_mov_b32 v{T+17}, {F1SC}
v_cmp_eq_u32 vcc, 0, v{T+2}
v_mov_b32 v{T+18}, 288
s_nop 0
v_cndmask_b32 v{T+16}, v{T+16}, v{T+17}, vcc
v_cmp_eq_u32 vcc, v{T+18}, v{T+2}
s_nop 1
v_cndmask_b32 v{T+16}, v{T+16}, v{T+17}, vcc""")
    for j in range(4): p.I(f"v_cos_f32 v{T+8+j}, v{T+4+j}\nv_sin_f32 v{T+12+j}, v{T+4+j}")
    p.I(f"v_mul_f32 v{T+8}, v{T+16}, v{T+8}\nv_mul_f32 v{T+12}, v{T+16}, v{T+12}")
    for j in range(1,4): p.I(f"v_mul_f32 v{T+8+j}, s{S_T3}, v{T+8+j}\nv_mul_f32 v{T+12+j}, s{S_T3}, v{T+12+j}")
    for j in range(4): p.I(f"v_cvt_pk_bf16_f32 v{T+20+j}, v{T+8+j}, v{T+12+j}")
    p.I(f"buffer_store_dwordx4 v[{T+20}:{T+23}], v{V_L16}, s[12:15], s{S_T1} offen sc1",kind="vm_opt")
    p.label("L1_NOIDFT")

def wt_issue(p):
    p.I(f"""s_sub_u32 s{S_T1}, s{S_CG}, 11
s_cmp_lt_u32 s{S_T1}, 4
s_cbranch_scc0 L1_NOWT1
s_load_dwordx4 s[84:87], s[0:1], 8
s_lshl_b32 s{S_T1}, s{S_T1}, 4
s_add_u32 s{S_WJ}, s{S_T1}, s{S_RT}
s_mul_i32 s{S_T2}, s{S_WJ}, 18496
s_waitcnt lgkmcnt(0)
s_mov_b32 s88, s84
s_mov_b32 s89, s85
s_mov_b32 s90, {WF_BYTES}
s_mov_b32 s91, 0x00020000""")
    for i in p.L:
        if i.kind in ("smem","wait"): i.kind="opt"
    for arr in range(2):
        if arr==1: p.I("s_mov_b32 s88, s86\ns_mov_b32 s89, s87")
        for t in range(5):
            p.I(f"""s_add_u32 s{S_T1}, s{S_W}, {4*t}
s_min_u32 s{S_T1}, s{S_T1}, 18
s_lshl_b32 s{S_T1}, s{S_T1}, 10
s_add_u32 m0, s{S_T1}, {LDS_DFTB+arr*19456}
s_add_u32 s{S_T3}, s{S_T1}, s{S_T2}""")
            p.I(f"buffer_load_dwordx4 v{V_L16}, s[88:91], s{S_T3} offen lds",kind="vm_opt")
    p.label("L1_NOWT1")

def wt_finish(p):
    T=V_T
    p.I(f"""s_sub_u32 s{S_T1}, s{S_CG}, 11
s_cmp_lt_u32 s{S_T1}, 4
s_cbranch_scc0 L1_NOWT2
s_waitcnt vmcnt(0) lgkmcnt(0)
s_barrier
v_and_b32 v{T}, 7, v{V_L}
v_lshrrev_b32 v{T+1}, 3, v{V_L}
s_lshl_b32 s{S_T1}, s{S_W}, 3
v_add_u32 v{T+1}, s{S_T1}, v{T+1}
v_mul_u32_u24 v{T+2}, {4*578}, v{T}
v_lshlrev_b32 v{T+3}, 1, v{T+1}
v_add_u32 v{T+2}, v{T+2}, v{T+3}
v_add_u32 v{T+2}, {LDS_DFTB}, v{T+2}
v_lshlrev_b32 v{T+3}, 13, v{T+1}
v_lshlrev_b32 v{T+4}, 4, v{T}
v_add_u32 v{T+3}, v{T+3}, v{T+4}
s_lshl_b32 s{S_T2}, s{S_WJ}, 7
s_add_u32 s{S_T2}, s{S_T2}, {WS_WT}
v_mov_b32 v{T+5}, 0x10000000""")
    for it in range(10):
        R=T+8+4*(it%2); H=T+16
        for e in range(4):
            p.I(f"ds_read_u16 v{R+e}, v{T+2} offset:{e*578+it*64}")
            p.I(f"ds_read_u16_d16_hi v{H+e}, v{T+2} offset:{e*578+it*64+19456}")
        p.I(f"""v_cmp_gt_u32 vcc, {289-32*it}, v{T+1}
s_nop 1
v_cndmask_b32 v{T+6}, v{T+5}, v{T+3}, vcc
s_waitcnt lgkmcnt(0)""")
        for e in range(4):
            p.I(f"v_and_b32 v{H+e}, 0xffff0000, v{H+e}\nv_or_b32 v{R+e}, v{R+e}, v{H+e}")
        p.I(f"buffer_store_dwordx4 v[{R}:{R+3}], v{T+6}, s[12:15], s{S_T2} offen sc1")
        p.I(f"s_add_u32 s{S_T2}, s{S_T2}, {32*8192}")
    p.label("L1_NOWT2")

def glu_units():
    U=[]
    for s in range(3):
        for i in range(18):
            st=18*s+i; slot=st%NSLOT
            for u in range(12):
                t=u>>1; mat=u&1
                hi = slot>=5
                base=(V_TROH if hi else V_TRO) if (t&1) else (V_TREH if hi else V_TRE)
                off=(slot-5 if hi else slot)*SLOT+mat*6144+32*t
                n=len(U); r=ring(n)
                reads=[Ins(f"ds_read_b64_tr_b16 v[{r}:{r+1}], v{base} offset:{off}",tag=("fr",n)),
                       Ins(f"ds_read_b64_tr_b16 v[{r+2}:{r+3}], v{base} offset:{off+768}",tag=("fr",n))]
                ms=[]
                for rb in range(2):
                    a=acc(s&1,t,mat,rb); x,_=XF(i,rb)
                    c=f"a[{a}:{a+3}]" if i>0 else "0"
                    ms.append(Ins(f"v_mfma_f32_16x16x32_bf16 a[{a}:{a+3}], v[{r}:{r+3}], {x}, {c}"))
                U.append(dict(reads=reads,mfmas=ms,stage=st,u=u))
    return U

def dft_units(n0, ab):
    U=[]
    for kk in range(18):
        for part in range(2):
            n=n0+len(U); r=ring(n)
            base=V_DA if ab==0 else V_DB
            reads=[Ins(f"ds_read_b128 v[{r}:{r+3}], v{base} offset:{(kk*2+part)*1024}",tag=("fr",n))]
            ms=[]
            for rb in range(2):
                a=dacc(ab,part,rb); x,_=XF(kk,rb)
                c=f"a[{a}:{a+3}]" if kk>0 else "0"
                ms.append(Ins(f"v_mfma_f32_16x16x32_bf16 a[{a}:{a+3}], v[{r}:{r+3}], {x}, {c}"))
            U.append(dict(reads=reads,mfmas=ms,stage=None,u=len(U)))
    return U

def h_epilogue(s, store_flags):
    L=[]; T=V_T
    g=0
    for pp in range(3):
        for rb in range(2):
            PK=V_T+16+4*(g%2); g+=1
            for ti in range(2):
                t=2*pp+ti
                for r in range(4): L.append(Ins(f"v_accvgpr_read_b32 v{T+r}, a{acc(s&1,t,0,rb)+r}"))
                for r in range(4): L.append(Ins(f"v_accvgpr_read_b32 v{T+4+r}, a{acc(s&1,t,1,rb)+r}"))
                for r in range(4): L.append(Ins(f"v_mul_f32 v{T+r}, v{T+r}, v{V_R2+rb}"))
                for r in range(4): L.append(Ins(f"v_mul_f32 v{T+r}, v{T+r}, v{T+4+r}"))
                L.append(Ins(f"v_cvt_pk_bf16_f32 v{PK+2*ti}, v{T}, v{T+1}"))
                L.append(Ins(f"v_cvt_pk_bf16_f32 v{PK+2*ti+1}, v{T+2}, v{T+3}"))
            ht=S_HT if (3*s+pp)%2==0 else S_HT2
            if rb==0: L.append(Ins(f"s_add_u32 s{ht}, s{S_HB}, {(3*s+pp)*8192}"))
            L.append(Ins(f"buffer_store_dwordx4 v[{PK}:{PK+3}], v{V_L16}, s[12:15], s{ht} offen offset:{rb*1024} {store_flags}",tag=("hst",s,pp,rb)))
    return L

def z_epilogue(ab, store_flags):
    L=[]; T=V_T+8
    zb=S_ZB if ab==0 else S_ZB2
    for rb in range(2):
        PK=V_T+24+4*rb
        for r in range(4): L.append(Ins(f"v_accvgpr_read_b32 v{T+r}, a{dacc(ab,0,rb)+r}"))
        for r in range(4): L.append(Ins(f"v_accvgpr_read_b32 v{T+4+r}, a{dacc(ab,1,rb)+r}"))
        for r in range(8): L.append(Ins(f"v_mul_f32 v{T+r}, v{T+r}, v{V_RSTD+rb}"))
        for r in range(4): L.append(Ins(f"v_cvt_pk_bf16_f32 v{PK+r}, v{T+r}, v{T+4+r}"))
        L.append(Ins(f"buffer_store_dwordx4 v[{PK}:{PK+3}], v{V_VZ}, s[12:15], s{zb} offen offset:{rb*256} {store_flags}",tag=("zst",ab,rb)))
    return L

def build(debug=False, store_flags="sc1", code_start="L1_START", code_end="CODE_END", name="l1_kernel", no_epi=False, no_store=False):
    p=Prog(); st=Stamps(64,debug)
    p.I(f"s_cmp_ge_u32 s2, 256\ns_cbranch_scc1 L1_END")
    st.stamp(p,"entry") if debug else None
    p.I("""s_load_dwordx2 s[52:53], s[0:1], 0
s_load_dwordx4 s[48:51], s[0:1], 32
s_load_dwordx2 s[54:55], s[0:1], 72""")
    p.I(f"""v_lshrrev_b32 v1, 6, v0
v_and_b32 v0, 63, v0
s_and_b32 s{S_T1}, s2, 7
s_lshr_b32 s{S_T2}, s2, 3
v_readfirstlane_b32 s{S_W}, v1
s_and_b32 s{S_CG}, s{S_T1}, 3
s_lshl_b32 s{S_CG}, s{S_CG}, 2
s_and_b32 s{S_T3}, s{S_T2}, 3
s_add_u32 s{S_CG}, s{S_CG}, s{S_T3}
s_lshr_b32 s{S_RT}, s{S_T1}, 2
s_lshl_b32 s{S_RT}, s{S_RT}, 3
s_lshr_b32 s{S_T2}, s{S_T2}, 2
s_add_u32 s{S_RT}, s{S_RT}, s{S_T2}
s_lshl_b32 s{S_ROT}, s{S_T3}, 1
s_add_u32 s{S_ROT}, s{S_ROT}, s{S_T2}
s_sub_u32 s{S_T1}, s{S_ROT}, 9
s_cmp_ge_u32 s{S_ROT}, 9
s_cselect_b32 s{S_ROT}, s{S_T1}, s{S_ROT}
s_mov_b32 s{S_XC}, s{S_ROT}
v_lshrrev_b32 v1, 3, v0
v_mul_u32_u24 v1, 1152, v1
v_and_b32 v2, 7, v0
v_lshrrev_b32 v3, 4, v0
v_xor_b32 v2, v2, v3
v_lshlrev_b32 v4, 4, v2
v_add_u32 v{V_VX}, v1, v4
v_xor_b32 v2, 4, v2
v_lshlrev_b32 v4, 4, v2
v_add_u32 v{V_VX+1}, v1, v4
v_add_u32 v{V_VX+1}, 8192, v{V_VX+1}
v_add_u32 v{V_VX+2}, 16384, v{V_VX}
v_add_u32 v{V_VX+3}, 16384, v{V_VX+1}
s_lshl_b32 s{S_XBASE}, s{S_RT}, 2
s_add_u32 s{S_XBASE}, s{S_XBASE}, s{S_W}
s_mul_i32 s{S_XBASE}, s{S_XBASE}, {32*1152}
s_mul_i32 s{S_XLDS}, s{S_W}, {SLOT}
s_add_u32 s{S_XLDS}, s{S_XLDS}, {XB0}
s_waitcnt lgkmcnt(0)""")
    srd(p,4,52,53,X_BYTES)
    for i in range(3): x_chunk_issue(p,i)
    st.stamp(p,"xissued")
    srd(p,12,54,55,WS_SIZE)
    p.I(f"v_lshlrev_b32 v{V_L16}, 4, v{V_L}")
    p.I(f"""s_lshr_b32 s{S_T1}, s{S_W}, 1
s_cmp_eq_u32 s{S_T1}, 0
s_cselect_b32 s8, s48, s50
s_cselect_b32 s9, s49, s51
s_mul_i32 s{S_T2}, s{S_CG}, 576
s_add_u32 s8, s8, s{S_T2}
s_addc_u32 s9, s9, 0
s_sub_u32 s10, {WG_BYTES}, s{S_T2}
s_mov_b32 s11, 0x00020000
s_mul_i32 s{S_M0W}, s{S_T1}, 6144
s_and_b32 s{S_T3}, s{S_W}, 1
s_mul_i32 s{S_T2}, s{S_T3}, 3072
s_add_u32 s{S_M0W}, s{S_M0W}, s{S_T2}
s_mul_i32 s{S_T3}, s{S_T3}, {16*9216}
s_lshl_b32 s{S_T2}, s{S_ROT}, 1
s_mul_i32 s{S_T1}, s{S_T2}, {32*9216}
s_add_u32 s{S_T3}, s{S_T3}, s{S_T1}
s_sub_u32 s{S_HT}, s{S_T3}, {18*32*9216}""")
    for i in range(18):
        p.I(f"s_cmp_ge_u32 s{S_T2}, {18-i}\ns_cselect_b32 s{S_T1}, s{S_HT}, s{S_T3}\ns_add_u32 s{S_SOFFW+i}, s{S_T1}, {i*32*9216}")
    for j in range(3):
        p.I(f"""v_add_u32 v1, {64*j}, v{V_L}
v_mul_u32_u24 v2, 5462, v1
v_lshrrev_b32 v2, 16, v2
v_mul_u32_u24 v3, 12, v2
v_sub_u32 v3, v1, v3
v_lshrrev_b32 v4, 3, v2
v_lshrrev_b32 v5, 1, v3
v_xor_b32 v5, v5, v4
v_and_b32 v3, 1, v3
v_lshlrev_b32 v5, 5, v5
v_lshlrev_b32 v3, 4, v3
v_mul_u32_u24 v2, 9216, v2
v_add3_u32 v2, v2, v5, v3
v_subrev_u32 v{V_VW+j}, {1024*j}, v2""")
    p.I(f"""v_lshrrev_b32 v1, 4, v{V_L}
v_bfe_u32 v2, v{V_L}, 2, 2
v_lshlrev_b32 v3, 3, v1
v_mov_b32 v{V_Q8}, v3
v_add_u32 v3, v3, v2
v_mul_u32_u24 v3, 192, v3
v_and_b32 v4, 3, v{V_L}
v_lshlrev_b32 v4, 3, v4
v_add_u32 v3, v3, v4
v_and_b32 v4, 1, v1
v_lshlrev_b32 v4, 5, v4
v_add_u32 v{V_TRE}, v3, v4
v_sub_u32 v{V_TRO}, v3, v4
v_add_u32 v{V_TREH}, {5*SLOT}, v{V_TRE}
v_add_u32 v{V_TROH}, {5*SLOT}, v{V_TRO}
v_and_b32 v2, 15, v{V_L}
v_lshrrev_b32 v3, 1, v2
v_xor_b32 v3, v3, v1
v_lshlrev_b32 v4, 7, v2
v_add_u32 v4, s{S_XLDS}, v4
v_lshlrev_b32 v5, 4, v3
v_add_u32 v{V_XR0}, v4, v5
v_xor_b32 v3, 4, v3
v_lshlrev_b32 v5, 4, v3
v_add_u32 v{V_XR1}, v4, v5
v_add_u32 v{V_DA}, {LDS_DFTA}, v{V_L16}
v_add_u32 v{V_DB}, {LDS_DFTB}, v{V_L16}
v_lshlrev_b32 v4, 15, v1
v_lshlrev_b32 v5, 4, v2
v_add_u32 v{V_VZ}, v4, v5
s_mul_i32 s{S_HB}, s{S_RT}, 144
s_mul_i32 s{S_T1}, s{S_CG}, 9
s_add_u32 s{S_HB}, s{S_HB}, s{S_T1}
s_lshl_b32 s{S_HB}, s{S_HB}, 3
s_lshl_b32 s{S_T1}, s{S_W}, 1
s_add_u32 s{S_HB}, s{S_HB}, s{S_T1}
s_lshl_b32 s{S_HB}, s{S_HB}, 10
s_lshl_b32 s{S_T1}, s{S_RT}, 2
s_add_u32 s{S_T1}, s{S_T1}, s{S_W}
s_lshl_b32 s{S_T1}, s{S_T1}, 9
s_add_u32 s{S_T1}, s{S_T1}, {WS_Z}
s_lshl_b32 s{S_T2}, s{S_CG}, 17
s_add_u32 s{S_ZB}, s{S_T1}, s{S_T2}
s_add_u32 s{S_ZB2}, s{S_ZB}, {16<<17}
s_mov_b32 s{S_ONES}, 0x3f803f80""")
    for r in range(8): p.I(f"v_mov_b32 v{V_S+r}, 0")
    gen_params(p,S_CG,LDS_DFTA)
    gen_tile(p)
    p.I(f"s_cmp_lt_u32 s{S_CG}, 2\ns_cbranch_scc0 L1_NOGB")
    gb=Prog()
    gb.I(f"s_add_u32 s63, s{S_CG}, 16")
    gen_params(gb,63,LDS_DFTB)
    gen_tile(gb)
    p.L+=gb.L
    p.label("L1_NOGB")
    idft_job(p)
    p.I(f"""s_getpc_b64 s[96:97]""")
    p.label("L1_PC")
    p.I(f"""s_sub_u32 s96, s96, L1_PC-{code_start}
s_subb_u32 s97, s97, 0
s_mov_b32 s98, {code_end}-{code_start}
s_mov_b32 s99, 0x00020000
s_lshr_b32 s{S_T1}, s2, 3
s_lshl_b32 s{S_T1}, s{S_T1}, 2
s_add_u32 s{S_T1}, s{S_T1}, s{S_W}
s_lshl_b32 s{S_T1}, s{S_T1}, 10
buffer_load_dwordx4 v[48:51], v{V_L16}, s[96:99], s{S_T1} offen""", tag=None)
    p.L[-1].tag="pf"
    st.stamp(p,"genA")
    for i in range(9):
        p.wv(("x",i))
        sl=(i%3)*4096
        for kk_ in range(2):
            for rb in range(2):
                x,_=XF(2*i+kk_,rb)
                p.I(f"ds_read_b128 {x}, v{V_XR0+kk_} offset:{sl+rb*2048}",tag=("xr",i))
        p.I("s_waitcnt lgkmcnt(0)")
        if i+3<9: x_chunk_issue(p,i+3)
        if i in (6,7):
            w_=w_stage_ins(i-6); p.add(w_[0]); p.I("s_nop 0")
            for ins in w_[1:]: p.add(ins)
        for kk_ in range(2):
            for rb in range(2):
                _,r=XF(2*i+kk_,rb)
                for d in range(4):
                    p.I(f"v_dot2_f32_bf16 v{V_S+2*rb+(d&1)}, v{r+d}, s{S_ONES}, v{V_S+2*rb+(d&1)}")
                    p.I(f"v_dot2_f32_bf16 v{V_S+4+2*rb+(d&1)}, v{r+d}, v{r+d}, v{V_S+4+2*rb+(d&1)}")
        if i==0: st.stamp(p,"x0")
    st.stamp(p,"xdone")
    p.I("s_waitcnt lgkmcnt(0)\ns_barrier")
    T=V_T
    p.I("s_nop 1")
    for k in range(4):
        p.I(f"v_add_f32 v{V_S+2*k}, v{V_S+2*k}, v{V_S+2*k+1}")
    for k in range(4): p.I(f"v_mov_b32 v{T+k}, v{V_S+2*k}")
    p.I("s_nop 0")
    for k in range(4): p.I(f"v_permlane32_swap_b32 v{V_S+2*k}, v{T+k}")
    p.I("s_nop 0")
    for k in range(4): p.I(f"v_add_f32 v{V_S+2*k}, v{V_S+2*k}, v{T+k}")
    for k in range(4): p.I(f"v_mov_b32 v{T+k}, v{V_S+2*k}")
    p.I("s_nop 0")
    for k in range(4): p.I(f"v_permlane16_swap_b32 v{V_S+2*k}, v{T+k}")
    p.I("s_nop 0")
    for k in range(4): p.I(f"v_add_f32 v{V_S+2*k}, v{V_S+2*k}, v{T+k}")
    p.I(f"s_mov_b32 s{S_T1}, 0x3ae38e39\ns_mov_b32 s{S_T2}, 0x3727c5ac")
    for rb in range(2):
        S=V_S+2*rb; SS=V_S+4+2*rb
        p.I(f"""v_mul_f32 v{S}, s{S_T1}, v{S}
v_mul_f32 v{SS}, s{S_T1}, v{SS}
v_fma_f32 v{SS}, -v{S}, v{S}, v{SS}
v_max_f32 v{SS}, 0, v{SS}
v_add_f32 v{SS}, s{S_T2}, v{SS}
v_rsq_f32 v{V_RSTD+rb}, v{SS}""")
        for r in range(4): p.I(f"v_sub_f32 v{T+4*rb+r}, 0, v{S}")
        p.I(f"v_mul_f32 v{V_R2+rb}, v{V_RSTD+rb}, v{V_RSTD+rb}")
    SEL=V_T+8
    p.I(f"""v_and_b32 v1, 15, v{V_L}
v_lshrrev_b32 v2, 2, v1
v_lshrrev_b32 v3, 4, v{V_L}
v_and_b32 v4, 3, v1
v_mov_b32 v5, 0x3f80
v_lshlrev_b32 v6, 4, v4
v_and_b32 v6, 16, v6
v_lshlrev_b32 v5, v6, v5
v_cmp_eq_u32 vcc, v2, v3
v_mov_b32 v7, 0
v_mov_b32 v{SEL}, 0
v_cndmask_b32 v5, v7, v5, vcc
v_mov_b32 v{SEL+1}, 0
v_cmp_gt_u32 vcc, 2, v4
v_mov_b32 v{SEL+4}, 0
v_mov_b32 v{SEL+5}, 0
v_cndmask_b32 v{SEL+2}, v7, v5, vcc
v_cndmask_b32 v{SEL+3}, v5, v7, vcc
s_nop 1""")
    fr=[(kk,rb) for kk in range(18) for rb in range(2)]
    def cv(f):
        kk,rb=fr[f]; _,r=XF(kk,rb); D=RING0+8*(f%3)
        return [Ins(f"v_cvt_pk_bf16_f32 v{r+j}, v{D+2*j}, v{D+2*j+1}") for j in range(4)]
    for f in range(36+2):
        c=cv(f-2) if f>=2 else []
        if f<36:
            kk,rb=fr[f]; x,_=XF(kk,rb); D=RING0+8*(f%3); C=T+4*rb
            p.I(f"v_mfma_f32_16x16x32_bf16 v[{D}:{D+3}], v[{SEL+2}:{SEL+5}], {x}, v[{C}:{C+3}]")
            for ins in c[:2]: p.add(ins)
            if not c: p.I("s_nop 1")
            p.I(f"v_mfma_f32_16x16x32_bf16 v[{D+4}:{D+7}], v[{SEL}:{SEL+3}], {x}, v[{C}:{C+3}]")
            for ins in c[2:]: p.add(ins)
            if not c: p.I("s_nop 1")
            for s_,f0 in ((2,3),(3,14),(4,25)):
                w_=w_stage_ins(s_)
                if f==f0: p.add(w_[0])
                if f in (f0+1,f0+3,f0+5): p.add(w_[1+(f-f0-1)//2])
        else:
            if f==36: p.I("s_nop 3")
            for ins in c: p.add(ins)
    st.stamp(p,"centered")
    U=glu_units(); nG=len(U)
    UA=dft_units(nG,0); U+=UA; nA=len(U)
    UB=dft_units(nA,1)
    p.wv(("w",0),("w",1))
    p.I("s_barrier")
    for n in range(PD):
        for r in U[n]["reads"]: p.add(r)
    p.wl(("fr",0),("fr",1))
    def sched(units, first, last, allunits, extra_fixed, streams):
        anchors=[];fixed={}
        def ok(ins,g):
            if STORE_UU is not None and ins.kind=="vm" and ins.tag and ins.tag[0]=="hst" and first<648:
                uu=((first+g//2)%24)
                return uu>=STORE_UU
            return True
        for n in range(first,last):
            u=allunits[n]
            g=2*(n-first)
            anchors+=u["mfmas"]
            fa=[];fb=[]
            if n+PD<len(allunits):
                rd=allunits[n+PD]["reads"]
                fa.append(rd[0])
                if len(rd)>1: fb.append(rd[1])
            if (n+1)%2==0 and n+1<len(allunits):
                w=mk_wl(("fr",n+1),("fr",n+2)); fb.append(w)
            fixed[g]=fa+extra_fixed.get((n,0),[]); fixed[g+1]=fb+extra_fixed.get((n,1),[])
        return schedule(anchors,fixed,streams,2,ok=ok)
    ex={}
    for Pg in range(27):
        n0=24*Pg
        s1,s2=2*Pg+5,2*Pg+6
        need=[("w",x) for x in (2*Pg+1,2*Pg+2) if x<54]
        if need:
            ex.setdefault((n0+4,0),[]).append(mk_wv(*need))
            ex.setdefault((n0+5,0),[]).append(Ins("s_barrier"))
        pos=[(6,0),(6,1),(8,0),(10,0),(12,0),(12,1),(14,0),(16,0)]
        items=[]
        for sx in (s1,s2):
            if sx<54: items.append(w_stage_ins(sx))
            else: items.append(None)
        if items[0]:
            for (uu,gb),ins in zip(pos[:4],items[0]): ex.setdefault((n0+uu,gb),[]).append(ins)
        if items[1]:
            for (uu,gb),ins in zip(pos[4:],items[1]): ex.setdefault((n0+uu,gb),[]).append(ins)
        for k,sx in enumerate((s1,s2)):
            if sx<54 and sx%18==0:
                a=srd_advance()
                assert k==1
                where=[(10,1),(10,1),(11,0)]
                for (uu,gb),ins in zip(where,a): ex.setdefault((n0+uu,gb),[]).append(ins)
    common_last=nA-PD
    out=[]
    bounds=[0,216,432,648]
    for s in range(3):
        strm=[[(i,0) for i in h_epilogue(s-1,store_flags)]] if s>0 else []
        if s>0: strm[0]=[(i,4) for i,_ in strm[0]]
        if s>0 and no_epi: strm=[]
        if s>0 and no_store: strm=[[x for x in strm[0] if x[0].kind!="vm"]]
        o,left=sched(U,bounds[s],bounds[s+1],U,ex,strm)
        assert not left, (s,len(left))
        if s==1:
            w_=Prog(); wt_issue(w_); out+=w_.L
        out+=o
    e2=h_epilogue(2,store_flags)
    o,left=sched(U,648,common_last,U,{},[[(i,4) for i in e2]])
    out+=o
    for i in out: p.add(i)
    st.stamp(p,"common")
    common=p
    t1=Prog()
    o,left1=sched(U,common_last,nA,U,{},[[(i,0) for i in left]])
    for i in o: t1.add(i)
    for i in left1: t1.add(i)
    t1.I("s_nop 7")
    for i in z_epilogue(0,store_flags): t1.add(i)
    wt_finish(t1)
    t2=Prog()
    import copy
    U2=[dict(u) for u in U]+UB
    left2=[Ins(i.text,tag=i.tag) for i in left]
    def cl(u): return dict(u,reads=[Ins(r.text,tag=r.tag) for r in u["reads"]],mfmas=[Ins(m.text) for m in u["mfmas"]])
    U2=[cl(u) for u in U2]
    zeA=z_epilogue(0,store_flags)
    strm=[(i,0) for i in left2]+[(i,2*(PD+4)) for i in zeA]
    o,left3=sched(U2,common_last,len(U2),U2,{},[strm])
    for i in o: t2.add(i)
    for i in left3: t2.add(i)
    t2.I("s_nop 7")
    for i in z_epilogue(1,store_flags): t2.add(i)
    full1=resolve_waits([i for i in common.L]+t1.L)
    nc=len([i for i in full1])
    ids1=set(id(i) for i in t1.L)
    c_res=[i for i in full1 if id(i) not in ids1]; t1_res=[i for i in full1 if id(i) in ids1]
    pref=[Ins(i.text,kind=i.kind,tag=i.tag) for i in c_res]
    full2=resolve_waits(pref+t2.L)
    ids2=set(id(i) for i in t2.L)
    t2_res=[i for i in full2 if id(i) in ids2]
    probs=check_hazards(c_res+t1_res,"L1/t1")+check_hazards(c_res[-40:]+t2_res,"L1/t2")
    P=Prog()
    P.I(f".globl {name}\n.p2align 8\n.type {name},@function",kind="dir")
    P.label(name); P.label(code_start)
    P.L+=c_res
    P.I(f"s_cmp_lt_u32 s{S_CG}, 2\ns_cbranch_scc1 L1_TAIL2")
    P.L+=t1_res
    e=Prog(); st.stamp(e,"end1");
    nst=st.n
    st.store(e,12,f"s_lshl_b32 s45, s2, 2\ns_add_u32 s45, s45, s{S_W}",80,0)
    P.L+=e.L
    P.I("s_endpgm")
    P.label("L1_TAIL2")
    P.L+=t2_res
    if debug:
        e=Prog(); st.n-=1; st.names.pop(); st.stamp(e,"end"); st.store(e,12,f"s_lshl_b32 s45, s2, 2\ns_add_u32 s45, s45, s{S_W}",80,0); P.L+=e.L
    P.label("L1_END")
    P.I("s_endpgm")
    return P, probs, st.names

if __name__=="__main__":
    P,probs,names=build(debug=False)
    for x in probs: print(x)
    print(len(P.L),"instructions")
```

```python
from common import *
import k2g
def build(debug=False, store_flags="sc1", fft=True, norot=False):
    st=Stamps(64,debug)
    P=Prog()
    name="l2_kernel"
    P.I(f".globl {name}\n.p2align 8\n.type {name},@function",kind="dir")
    P.label(name)
    P.I("s_cmp_ge_u32 s2, 256\ns_cbranch_scc1 L2_END")
    st.stamp(P,"entry")
    P.I("s_lshr_b32 s45, s2, 3\ns_cmp_ge_u32 s45, 24\ns_cbranch_scc1 L2_FFT")
    g=k2g.build_gemm2(store_flags=store_flags, st=st, norot=norot)
    L=resolve_waits(g.L)
    probs=check_hazards(L,"G2")
    P.L+=L
    e=Prog(); st.stamp(e,"end"); st.store(e,12,"s_lshl_b32 s45, s2, 2\ns_add_u32 s45, s45, s16",100,0x40000); P.L+=e.L
    P.I("s_endpgm")
    P.label("L2_FFT")
    if fft:
        import k2f
        f,pr=k2f.build_fft(debug=debug)
        P.L+=f.L; probs+=pr
    P.label("L2_END")
    P.I("s_endpgm")
    return P,probs,st.names
```

```python
from common import *
LDS_C32=0; LDS_C64=8192; LDS_T1=40960; LDS_T2=57344; LDS_X=73728
S_W=16;S_FW=17;S_Q=18;S_F=19;S_ZO=20;S_WO=21;S_YO=22;S_T1=45;S_T2=46;S_T3=47;S_MODE=23;S_IT=24
V_L=0;V_L16=1;V_ZA=2;V_WA=3;V_XW=4;V_XR=5;V_YA=6;V_LF=7;V_H4=8;V_TW=12
ZR=16
WR=48
D0=80
CR=144
TT=176
def D(a,out): return D0+(a*2+out)*16

def gen_consts(p):
    T=TT
    p.I(f"""v_and_b32 v{T}, 31, v{V_L}
v_cvt_f32_u32 v{V_LF}, v{T}
v_lshrrev_b32 v{V_H4}, 5, v{V_L}
v_lshlrev_b32 v{V_H4}, 2, v{V_H4}""")
    p.I(f"s_mul_i32 s{S_IT}, s{S_W}, 5\ns_add_u32 s{S_T3}, s{S_IT}, 5\ns_mov_b32 s25, s{S_T3}")
    p.label("F_GC")
    p.I(f"""s_cmp_ge_u32 s{S_IT}, 16
s_mov_b32 s26, 0x3c800000
s_cselect_b32 s26, 0x3d000000, s26
s_cselect_b32 s27, 0, 1
s_and_b32 s28, s{S_IT}, 7
s_lshr_b32 s29, s{S_IT}, 3
s_mul_i32 s29, s29, s27
s_sub_u32 s{S_T1}, s{S_IT}, 16
s_lshl_b32 s{S_T1}, s{S_T1}, 10
s_add_u32 s{S_T1}, s{S_T1}, {LDS_C32}
s_lshl_b32 s{S_T2}, s29, 4
s_add_u32 s{S_T2}, s{S_T2}, s28
s_lshl_b32 s{S_T2}, s{S_T2}, 10
s_add_u32 s{S_T2}, s{S_T2}, {LDS_C64}
s_cmp_ge_u32 s{S_IT}, 16
s_cselect_b32 s30, s{S_T1}, s{S_T2}
s_movk_i32 s31, 0x2000
s_cselect_b32 s31, 4096, s31
s_lshl_b32 s28, s28, 3
s_lshl_b32 s29, s29, 5
v_cvt_f32_u32 v{T}, s29
v_add_f32 v{T}, v{T}, v{V_LF}
v_mul_f32 v{T}, s26, v{T}
v_add_u32 v{T+1}, s28, v{V_H4}
v_cvt_f32_u32 v{T+1}, v{T+1}
v_mul_f32 v{T+2}, v{T+1}, v{T}""")
    for j in range(1,4): p.I(f"v_add_f32 v{T+2+j}, v{T+1+j}, v{T}")
    for j in range(4):
        p.I(f"v_cos_f32 v{T+8+j}, v{T+2+j}\nv_sin_f32 v{T+12+j}, v{T+2+j}")
    p.I(f"v_add_u32 v{T+6}, s30, v{V_L16}\nv_add_u32 v{T+7}, s31, v{T+6}")
    for j in range(4): p.I(f"v_cvt_pk_bf16_f32 v{T+16+j}, v{T+8+j}, v{T+12+j}")
    for j in range(4): p.I(f"v_cvt_pk_bf16_f32 v{T+20+j}, -v{T+12+j}, v{T+8+j}")
    p.I(f"ds_write_b128 v{T+6}, v[{T+16}:{T+19}]\nds_write_b128 v{T+7}, v[{T+20}:{T+23}]")
    p.I(f"s_add_u32 s{S_IT}, s{S_IT}, 1\ns_cmp_lt_u32 s{S_IT}, s25\ns_cbranch_scc1 F_GC")
    p.I(f"s_lshl_b32 s{S_IT}, s{S_W}, 3\ns_add_u32 s25, s{S_IT}, 8")
    p.label("F_GT")
    p.I(f"""s_and_b32 s26, s{S_IT}, 7
s_lshl_b32 s27, s26, 1
s_and_b32 s27, s27, 3
s_lshr_b32 s28, s26, 1
s_lshl_b32 s28, s28, 3
s_add_u32 s27, s27, s28
s_bfe_u32 s28, s{S_IT}, 0x10003
s_lshl_b32 s28, s28, 5
s_cmp_ge_u32 s{S_IT}, 16
s_cselect_b32 s29, 0, s28
s_cselect_b32 s30, s28, 0
s_add_u32 s27, s27, s29
v_add_u32 v{T}, s27, v{V_H4}
v_cvt_f32_u32 v{T}, v{T}
v_cvt_f32_u32 v{T+1}, s30
v_add_f32 v{T+1}, v{T+1}, v{V_LF}
v_mul_f32 v{T+1}, 0x3a000000, v{T+1}
v_mul_f32 v{T+2}, v{T}, v{T+1}
v_add_f32 v{T+3}, v{T+2}, v{T+1}
v_cos_f32 v{T+4}, v{T+2}
v_sin_f32 v{T+5}, v{T+2}
v_cos_f32 v{T+6}, v{T+3}
v_sin_f32 v{T+7}, v{T+3}
s_lshl_b32 s31, s{S_IT}, 10
s_add_u32 s31, s31, {LDS_T1}
v_add_u32 v{T+8}, s31, v{V_L16}
ds_write_b128 v{T+8}, v[{T+4}:{T+7}]
s_add_u32 s{S_IT}, s{S_IT}, 1
s_cmp_lt_u32 s{S_IT}, s25
s_cbranch_scc1 F_GT""")

def twiddle(p, tab, a, dst):
    re=D(a,0); im=D(a,1); T=TT
    for rp in range(8):
        tb=T+4*(rp%4)
        p.I(f"ds_read_b128 v[{tb}:{tb+3}], v{V_L16} offset:{tab+rp*1024}",tag=("tw",tab,rp))
        if rp>=3 or rp==7:
            pass
    return

def build_fft(debug=False):
    p=Prog()
    p.I("""s_load_dwordx2 s[54:55], s[0:1], 72""")
    p.I(f"""v_lshrrev_b32 v1, 6, v0
v_and_b32 v0, 63, v0
s_and_b32 s{S_T1}, s2, 7
s_lshr_b32 s{S_T2}, s2, 3
v_readfirstlane_b32 s{S_W}, v1
s_sub_u32 s{S_T2}, s{S_T2}, 24
s_lshl_b32 s{S_FW}, s{S_T2}, 3
s_add_u32 s{S_FW}, s{S_FW}, s{S_T1}
s_mov_b32 s{S_Q}, s{S_FW}
v_lshlrev_b32 v{V_L16}, 4, v0
v_and_b32 v9, 31, v0
v_lshrrev_b32 v10, 5, v0
v_lshlrev_b32 v{V_ZA}, 4, v9
v_lshlrev_b32 v11, 12, v10
v_add_u32 v{V_ZA}, v{V_ZA}, v11
v_lshlrev_b32 v{V_WA}, 2, v9
v_lshlrev_b32 v11, 9, v10
v_add_u32 v{V_WA}, v{V_WA}, v11
s_lshl_b32 s{S_T1}, s{S_W}, 2
s_add_u32 s{S_T1}, s{S_T1}, {LDS_X}
v_add_u32 v{V_XW}, s{S_T1}, v{V_ZA}
s_lshl_b32 s{S_T1}, s{S_W}, 13
s_add_u32 s{S_T1}, s{S_T1}, {LDS_X}
v_add_u32 v{V_XR}, s{S_T1}, v{V_L16}
v_lshrrev_b32 v9, 4, v0
v_mul_u32_u24 v9, 19456, v9
v_and_b32 v10, 15, v0
v_lshlrev_b32 v10, 4, v10
v_add_u32 v{V_YA}, v9, v10
v_add_u32 v{V_TW}, {LDS_T1}, v{V_L16}
s_waitcnt lgkmcnt(0)""")
    srd(p,12,54,55,WS_SIZE)
    def issue_loads(p):
        p.I(f"""s_lshl_b32 s{S_F}, s{S_Q}, 2
s_add_u32 s{S_F}, s{S_F}, s{S_W}
s_lshl_b32 s{S_ZO}, s{S_Q}, 15
s_lshl_b32 s{S_T1}, s{S_W}, 2
s_add_u32 s{S_ZO}, s{S_ZO}, s{S_T1}
s_cmp_eq_u32 s{S_F}, 0
s_cselect_b32 s{S_MODE}, 1, 0
s_cmp_eq_u32 s{S_F}, 288
s_cselect_b32 s{S_MODE}, 2, s{S_MODE}
s_cselect_b32 s{S_ZO}, 0, s{S_ZO}
s_cmp_gt_u32 s{S_F}, 288
s_cselect_b32 s{S_MODE}, 3, s{S_MODE}
s_cselect_b32 s{S_ZO}, 0, s{S_ZO}
s_cselect_b32 s{S_F}, 0, s{S_F}
s_add_u32 s{S_ZO}, s{S_ZO}, {WS_Z}
s_lshl_b32 s{S_WO}, s{S_F}, 13
s_add_u32 s{S_WO}, s{S_WO}, {WS_WT}""")
        for ks in range(4):
            for mt in range(2):
                for jj in range(4):
                    r=ZR+(mt*4+ks)*4+jj
                    p.I(f"buffer_load_dword v{r}, v{V_ZA}, s[12:15], s{S_ZO} offen offset:{1024*jj+512*mt}",tag="z")
            if ks<3: p.I(f"s_add_u32 s{S_ZO}, s{S_ZO}, 8192")
    issue_loads(p)
    g=Prog(); gen_consts(g); p.L+=g.L
    p.I("s_waitcnt lgkmcnt(0)\ns_barrier")
    p.label("F_JOB")
    body=Prog()
    b=body
    b.I("s_waitcnt vmcnt(0)")
    for T_ in range(2):
        for r in range(16):
            b.I(f"buffer_load_dword v{WR+T_*16+r}, v{V_WA}, s[12:15], s{S_WO} offen offset:{128*(r&3)+1024*(r>>2)}",tag="w")
        if T_==0: b.I(f"s_add_u32 s{S_WO}, s{S_WO}, 4096")
    b.I(f"s_cmp_eq_u32 s{S_MODE}, 0\ns_cbranch_scc1 F_NORM\ns_cmp_eq_u32 s{S_MODE}, 1\ns_cbranch_scc0 F_NYQ")
    for r in range(32): b.I(f"v_and_b32 v{ZR+r}, 0xffff, v{ZR+r}")
    b.I("s_branch F_NORM")
    b.label("F_NYQ")
    for r in range(32): b.I(f"v_lshrrev_b32 v{ZR+r}, 16, v{ZR+r}")
    b.label("F_NORM")
    b.I("s_nop 1")
    cnt=[0]
    def cread(off):
        n=cnt[0]; cnt[0]+=1; r=CR+4*(n%8)
        return Ins(f"ds_read_b128 v[{r}:{r+3}], v{V_L16} offset:{off}",tag=("c",n)), r, n
    def mfma_phase(items):
        rd=[cread(o) for o,_ in items]
        PDc=4
        for i in range(min(PDc,len(rd))): b.add(rd[i][0])
        for i,(o,fn) in enumerate(items):
            b.wl(("c",rd[i][2]))
            b.I(fn(rd[i][1]))
            if i+PDc<len(rd): b.add(rd[i+PDc][0])
    def mf(d,a,bb,first): return f"v_mfma_f32_32x32x16_bf16 v[{d}:{d+15}], v[{a}:{a+3}], v[{bb}:{bb+3}], "+("0" if first else f"v[{d}:{d+15}]")
    it=[]
    for mt in range(2):
        for out in range(2):
            for ks in range(4):
                it.append((LDS_C32+(out*4+ks)*1024, (lambda cr,mt=mt,out=out,ks=ks: mf(D(mt,out), ZR+(mt*4+ks)*4, cr, ks==0))))
    mfma_phase(it)
    def cmul_conj_tw(tab_base, a, dst):
        re=D(a,0); im=D(a,1)
        for rp in range(8):
            tb=TT+4*(rp%4)
            if rp==0:
                for k in range(3): b.I(f"ds_read_b128 v[{TT+4*k}:{TT+4*k+3}], v{V_TW} offset:{tab_base-LDS_T1+k*1024}",tag=("t",tab_base,k))
            if rp+3<8:
                k=rp+3; b.I(f"ds_read_b128 v[{TT+4*(k%4)}:{TT+4*(k%4)+3}], v{V_TW} offset:{tab_base-LDS_T1+k*1024}",tag=("t",tab_base,k))
            b.wl(("t",tab_base,rp))
            for e in range(2):
                r=2*rp+e; c=tb+2*e; s=c+1; t0=TT+16+2*e; t1=t0+1
                b.I(f"v_mul_f32 v{t0}, v{re+r}, v{c}\nv_mul_f32 v{t1}, v{im+r}, v{c}")
                b.I(f"v_fma_f32 v{t0}, v{im+r}, v{s}, v{t0}\nv_fma_f32 v{t1}, -v{re+r}, v{s}, v{t1}")
                b.I(f"v_cvt_pk_bf16_f32 v{dst+r}, v{t0}, v{t1}")
    b.I("s_nop 7\ns_nop 3")
    for mt in range(2): cmul_conj_tw(LDS_T1+mt*8192, mt, ZR+16*mt)
    b.I("s_nop 1")
    it=[]
    for T_ in range(2):
        for out in range(2):
            for ks in range(8):
                it.append((LDS_C64+((T_*2+out)*8+ks)*1024,(lambda cr,T_=T_,out=out,ks=ks: mf(D(T_,out), cr, ZR+4*ks, ks==0))))
    mfma_phase(it)
    b.I("s_waitcnt vmcnt(0)\ns_nop 7\ns_nop 3")
    for T_ in range(2):
        re=D(T_,0); im=D(T_,1)
        for r in range(16):
            w=WR+T_*16+r; t=TT+8*(r%2)
            b.I(f"""v_lshlrev_b32 v{t}, 16, v{w}
v_and_b32 v{t+1}, 0xffff0000, v{w}
v_mul_f32 v{t+2}, v{re+r}, v{t}
v_mul_f32 v{t+3}, v{im+r}, v{t}
v_fma_f32 v{t+2}, -v{im+r}, v{t+1}, v{t+2}
v_fma_f32 v{t+3}, v{re+r}, v{t+1}, v{t+3}
v_cvt_pk_bf16_f32 v{ZR+16*T_+r}, v{t+2}, -v{t+3}""")
    b.I("s_nop 1")
    it=[]
    for nt in range(2):
        for out in range(2):
            for ks in range(8):
                it.append((LDS_C64+((nt*2+out)*8+ks)*1024,(lambda cr,nt=nt,out=out,ks=ks: mf(D(nt,out), ZR+4*ks, cr, ks==0))))
    mfma_phase(it)
    b.I("s_nop 7\ns_nop 3")
    for nt in range(2): cmul_conj_tw(LDS_T2+nt*8192, nt, ZR+16*nt)
    b.I("s_nop 1")
    it=[]
    for nt in range(2):
        for out in range(2):
            for ks in range(4):
                it.append((LDS_C32+(out*4+ks)*1024,(lambda cr,nt=nt,out=out,ks=ks: mf(D(nt,out), cr, ZR+16*nt+4*ks, ks==0))))
    mfma_phase(it)
    b.I("s_nop 7\ns_nop 3")
    for nt in range(2):
        for r in range(16):
            b.I(f"v_cvt_pk_bf16_f32 v{ZR+16*nt+r}, v{D(nt,0)+r}, v{D(nt,1)+r}")
    b.I(f"s_cmp_eq_u32 s{S_MODE}, 3\ns_cbranch_scc0 F_NZ")
    for r in range(32): b.I(f"v_mov_b32 v{ZR+r}, 0")
    b.label("F_NZ")
    for nt in range(2):
        for r in range(16):
            b.I(f"ds_write_b32 v{V_XW}, v{ZR+16*nt+r} offset:{512*nt+1024*(r&3)+8192*(r>>2)}")
            if (16*nt+r)%8==7: b.I("s_waitcnt lgkmcnt(4)")
    b.I("s_waitcnt lgkmcnt(0)\ns_barrier")
    b.I(f"""s_lshr_b32 s{S_T1}, s{S_Q}, 2
s_lshl_b32 s{S_T1}, s{S_T1}, 10
s_and_b32 s{S_T2}, s{S_Q}, 3
s_lshl_b32 s{S_T2}, s{S_T2}, 8
s_add_u32 s{S_T1}, s{S_T1}, s{S_T2}
s_mul_i32 s{S_YO}, s{S_W}, {32*19456}
s_add_u32 s{S_YO}, s{S_YO}, s{S_T1}
s_add_u32 s{S_YO}, s{S_YO}, {WS_Y}""")
    for i in range(8):
        b.I(f"ds_read_b128 v[{D0+4*i}:{D0+4*i+3}], v{V_XR} offset:{i*1024}",tag=("xo",i))
    for i in range(8):
        b.wl(("xo",i))
        b.I(f"buffer_store_dwordx4 v[{D0+4*i}:{D0+4*i+3}], v{V_YA}, s[12:15], s{S_YO} offen sc1")
        if i<7: b.I(f"s_add_u32 s{S_YO}, s{S_YO}, {4*19456}")
    b.I(f"s_add_u32 s{S_Q}, s{S_Q}, 64\ns_cmp_gt_u32 s{S_Q}, 72\ns_cbranch_scc1 F_DONE")
    nx=Prog(); issue_loads(nx)
    b.L+=nx.L
    b.I("s_barrier\ns_branch F_JOB")
    b.label("F_DONE")
    Lb=resolve_waits(body.L)
    probs=check_hazards(p.L,"FFTpre")+check_hazards(Lb,"FFT")
    P=Prog(); P.L=p.L+Lb
    return P,probs
```

```python
from common import *
NSLOT=7; SLOT=12288; PD=6; RING0=48; NRING=8
HD=6
HR0=80
NH=7
ACC0=136
S_W=16;S_RT=17;S_DT=18;S_KSL=19;S_ROT=20;S_M0W=21;S_WOFF=22;S_HOFF=23;S_WPH=24;S_HPH=25;S_WB=26;S_HB=27;S_CNT=28;S_PB=29
S_T1=45;S_T2=46;S_T3=47
V_L=0;V_VW=20;V_TB=24
V_L16=32
def acc(t,rb): return ACC0+(t*2+rb)*4
def ring(U): return RING0+4*(U%NRING)
def hreg(ks,rb): return HR0+(ks%NH)*8+rb*4

def build_gemm2(P_setup_done=False, store_flags="sc1", st=None, prefix="G2", norot=False):
    p=Prog()
    p.I("""s_load_dwordx2 s[48:49], s[0:1], 48
s_load_dwordx2 s[54:55], s[0:1], 72""")
    p.I(f"""v_lshrrev_b32 v1, 6, v0
v_and_b32 v0, 63, v0
s_and_b32 s{S_T1}, s2, 7
s_lshr_b32 s{S_T2}, s2, 3
v_readfirstlane_b32 s{S_W}, v1
s_and_b32 s{S_KSL}, s{S_T1}, 3
s_lshr_b32 s{S_RT}, s{S_T1}, 2
s_lshl_b32 s{S_RT}, s{S_RT}, 3
s_mul_i32 s{S_T3}, s{S_T2}, 21846
s_lshr_b32 s{S_T3}, s{S_T3}, 16
s_add_u32 s{S_RT}, s{S_RT}, s{S_T3}
s_mul_i32 s{S_T1}, s{S_T3}, 3
s_sub_u32 s{S_DT}, s{S_T2}, s{S_T1}
s_lshl_b32 s{S_ROT}, s{S_DT}, 1
s_add_u32 s{S_ROT}, s{S_ROT}, s{S_T3}
s_sub_u32 s{S_T1}, s{S_ROT}, 6
s_cmp_ge_u32 s{S_ROT}, 6
s_cselect_b32 s{S_ROT}, s{S_T1}, s{S_ROT}
s_sub_u32 s{S_T1}, s{S_ROT}, 6
s_cmp_ge_u32 s{S_ROT}, 6
s_cselect_b32 s{S_ROT}, s{S_T1}, s{S_ROT}
s_mul_i32 s{S_ROT}, s{S_ROT}, {0 if norot else 6}
v_lshlrev_b32 v{V_L16}, 4, v0""")
    p.I(f"""s_mul_i32 s{S_WB}, s{S_KSL}, {36*32}
s_lshl_b32 s{S_T1}, s{S_W}, 3
s_add_u32 s{S_WB}, s{S_WB}, s{S_T1}
s_mul_i32 s{S_WB}, s{S_WB}, 1152
s_mul_i32 s{S_T1}, s{S_DT}, 384
s_add_u32 s{S_WB}, s{S_WB}, s{S_T1}
s_mul_i32 s{S_HB}, s{S_RT}, 144
s_mul_i32 s{S_T1}, s{S_KSL}, 36
s_add_u32 s{S_HB}, s{S_HB}, s{S_T1}
s_lshl_b32 s{S_HB}, s{S_HB}, 3
s_lshl_b32 s{S_T1}, s{S_W}, 1
s_add_u32 s{S_HB}, s{S_HB}, s{S_T1}
s_lshl_b32 s{S_HB}, s{S_HB}, 10
s_add_u32 s{S_HB}, s{S_HB}, {WS_H}
s_mul_i32 s{S_WOFF}, s{S_ROT}, {32*1152}
s_add_u32 s{S_WOFF}, s{S_WOFF}, s{S_WB}
s_lshl_b32 s{S_HOFF}, s{S_ROT}, 13
s_add_u32 s{S_HOFF}, s{S_HOFF}, s{S_HB}
s_mov_b32 s{S_WPH}, s{S_ROT}
s_mov_b32 s{S_HPH}, s{S_ROT}
s_mul_i32 s{S_M0W}, s{S_W}, 3072""")
    for j in range(3):
        p.I(f"""v_add_u32 v1, {64*j}, v{V_L}
v_mul_u32_u24 v2, 2731, v1
v_lshrrev_b32 v2, 16, v2
v_mul_u32_u24 v3, 24, v2
v_sub_u32 v3, v1, v3
v_bfe_u32 v4, v2, 1, 2
v_lshrrev_b32 v5, 1, v3
v_xor_b32 v5, v5, v4
v_and_b32 v3, 1, v3
v_lshlrev_b32 v5, 5, v5
v_lshlrev_b32 v3, 4, v3
v_mul_u32_u24 v2, 1152, v2
v_add3_u32 v2, v2, v5, v3
v_subrev_u32 v{V_VW+j}, {1024*j}, v2""")
    p.I("s_waitcnt lgkmcnt(0)")
    srd(p,8,48,49,WD_BYTES); srd(p,12,54,55,WS_SIZE)
    def adv_w():
        return [Ins(f"s_add_u32 s{S_WOFF}, s{S_WOFF}, {32*1152}")]
    def wrap_w():
        return [Ins(f"s_add_u32 s{S_WPH}, s{S_WPH}, 6"),Ins(f"s_cmp_eq_u32 s{S_WPH}, 36"),
                Ins(f"s_cselect_b32 s{S_WPH}, 0, s{S_WPH}"),Ins(f"s_cselect_b32 s{S_WOFF}, s{S_WB}, s{S_WOFF}")]
    def adv_h(): return [Ins(f"s_add_u32 s{S_HOFF}, s{S_HOFF}, 8192")]
    def wrap_h():
        return [Ins(f"s_add_u32 s{S_HPH}, s{S_HPH}, 6"),Ins(f"s_cmp_eq_u32 s{S_HPH}, 36"),
                Ins(f"s_cselect_b32 s{S_HPH}, 0, s{S_HPH}"),Ins(f"s_cselect_b32 s{S_HOFF}, s{S_HB}, s{S_HOFF}")]
    def w_stage(stg):
        slot=stg%NSLOT
        L=[Ins(f"s_add_u32 m0, s{S_M0W}, {slot*SLOT}")]
        for j in range(3): L.append(Ins(f"buffer_load_dwordx4 v{V_VW+j}, s[8:11], s{S_WOFF} offen offset:{j*1024} lds",tag=("w",stg)))
        L+=adv_w()
        if stg%6==5: L+=wrap_w()
        return L
    def h_load(ks):
        L=[]
        for rb in range(2):
            r=hreg(ks,rb)
            L.append(Ins(f"buffer_load_dwordx4 v[{r}:{r+3}], v{V_L16}, s[12:15], s{S_HOFF} offen offset:{rb*1024}",tag=("h",ks)))
        L+=adv_h()
        if ks%6==5: L+=wrap_h()
        return L
    for k in range(5):
        l=w_stage(k); p.add(l[0]); p.I("s_nop 0")
        hl=h_load(k)
        for x in l[1:]: p.add(x)
        for x in hl: p.add(x)
    for x in h_load(5): p.add(x)
    p.I(f"""v_lshrrev_b32 v1, 4, v{V_L}
v_bfe_u32 v2, v{V_L}, 2, 2
v_lshlrev_b32 v3, 2, v1
v_add_u32 v3, v3, v2
v_mul_u32_u24 v3, 384, v3
v_and_b32 v4, 3, v{V_L}
v_lshlrev_b32 v4, 3, v4
v_add_u32 v3, v3, v4
v_and_b32 v4, 1, v1
v_lshlrev_b32 v4, 1, v4
v_lshrrev_b32 v5, 1, v2
v_add_u32 v4, v4, v5""")
    for b in range(4):
        p.I(f"""v_xor_b32 v5, {b}, v4
v_lshlrev_b32 v5, 5, v5
v_add_u32 v{V_TB+b}, v3, v5
v_add_u32 v{V_TB+4+b}, {5*SLOT}, v{V_TB+b}""")
    p.I(f"""s_lshl_b32 s{S_PB}, s{S_KSL}, 4
s_add_u32 s{S_PB}, s{S_PB}, s{S_RT}
s_lshl_b32 s{S_PB}, s{S_PB}, 2
s_add_u32 s{S_PB}, s{S_PB}, s{S_W}
s_mul_i32 s{S_PB}, s{S_PB}, 36
s_mul_i32 s{S_T1}, s{S_DT}, 12
s_add_u32 s{S_PB}, s{S_PB}, s{S_T1}
s_lshl_b32 s{S_PB}, s{S_PB}, 10
s_add_u32 s{S_PB}, s{S_PB}, {WS_P}""")
    if st: st.stamp(p,"issued")
    NK=36
    def unit(n, first_pass):
        ks=n//12; t=n%12; slot=ks%NSLOT; hi=slot>=5
        base=V_TB+(4 if hi else 0)+(t&3)
        off=(slot-5 if hi else slot)*SLOT+128*(t>>2)
        r=ring(n)
        reads=[Ins(f"ds_read_b64_tr_b16 v[{r}:{r+1}], v{base} offset:{off}",tag=("fr",n)),
               Ins(f"ds_read_b64_tr_b16 v[{r+2}:{r+3}], v{base} offset:{off+6144}",tag=("fr",n))]
        ms=[]
        for rb in range(2):
            a=acc(t,rb); h=hreg(ks,rb)
            c=f"v[{a}:{a+3}]" if ks>0 else "0"
            ms.append(Ins(f"v_mfma_f32_16x16x32_bf16 v[{a}:{a+3}], v[{r}:{r+3}], v[{h}:{h+3}], {c}"))
        return dict(reads=reads,mfmas=ms)
    U=[unit(n,True) for n in range(NK*12)]
    p.wv(("w",0)); p.I("s_barrier")
    for n in range(PD):
        for r in U[n]["reads"]: p.add(r)
    p.wv(("h",0))
    p.wl(("fr",0),("fr",1))
    anchors=[];fixed={}
    ex={}
    for Pg in range(NK//2):
        n0=24*Pg
        need=[("w",x) for x in (2*Pg+1,2*Pg+2) if x<NK]
        if need:
            ex.setdefault((n0+4,0),[]).append(mk_wv(*need))
            ex.setdefault((n0+5,0),[]).append(Ins("s_barrier"))
        posA=[(6,0),(6,1),(8,0),(10,0),(11,0),(1,0),(1,0),(2,0),(2,1)]
        s1,s2=2*Pg+5,2*Pg+6
        if s1<NK:
            l=w_stage(s1)
            pos=[(6,0),(6,1),(8,0),(10,0),(11,0)]+[(11,0)]*4
            for (uu,gb),ins in zip(pos,l): ex.setdefault((n0+uu,gb),[]).append(ins)
        if s2<NK:
            l=w_stage(s2)
            pos=[(12,0),(12,1),(14,0),(16,0),(17,0)]+[(17,0)]*4
            for (uu,gb),ins in zip(pos,l): ex.setdefault((n0+uu,gb),[]).append(ins)
        for half in range(2):
            ks=2*Pg+half; kn=ks+6
            if ks+1<NK: ex.setdefault((n0+12*half+10,1),[]).append(mk_wv(("h",ks+1)))
            if kn<NK:
                l=h_load(kn)
                b=12*half
                pos=[(b+0,0),(b+2,0),(b+3,0)]+[(b+3,0)]*4
                if half==1: pos=[(b+6,0),(b+8,0),(b+9,0)]+[(b+9,0)]*4
                if half==0: pos=[(0,0),(2,0),(3,0)]+[(3,0)]*4
                for (uu,gb),ins in zip(pos,l): ex.setdefault((n0+uu,gb),[]).append(ins)
    for n in range(len(U)):
        u=U[n]; g=2*n; anchors+=u["mfmas"]; fa=[];fb=[]
        if n+PD<len(U):
            rd=U[n+PD]["reads"]; fa.append(rd[0]); fb.append(rd[1])
        if (n+1)%2==0 and n+1<len(U): fb.append(mk_wl(("fr",n+1),("fr",n+2)))
        fixed[g]=fa+ex.get((n,0),[]); fixed[g+1]=fb+ex.get((n,1),[])
    o,left=schedule(anchors,fixed,[],2)
    for i in o: p.add(i)
    if st: st.stamp(p,"main")
    p.I("s_nop 7")
    for t in range(12):
        PK=RING0+4*(t%4)
        a0=acc(t,0); a1=acc(t,1)
        p.I(f"""v_cvt_pk_bf16_f32 v{PK}, v{a0}, v{a0+1}
v_cvt_pk_bf16_f32 v{PK+1}, v{a0+2}, v{a0+3}
v_cvt_pk_bf16_f32 v{PK+2}, v{a1}, v{a1+1}
v_cvt_pk_bf16_f32 v{PK+3}, v{a1+2}, v{a1+3}""")
        if t%4==0 and t>0: p.I(f"s_add_u32 s{S_PB}, s{S_PB}, 4096")
        p.I(f"buffer_store_dwordx4 v[{PK}:{PK+3}], v{V_L16}, s[12:15], s{S_PB} offen offset:{(t%4)*1024} {store_flags}")
    return p
```

```python
from common import *
S_W=16;S_RBP=17;S_TD=18;S_IO=20;S_YO=21;S_PO=22;S_XO=23;S_T1=45;S_T2=46
V_L=0;V_L16=1;V_Y1=2;V_YN0=3;V_YN1=4;V_XA=5
ACC=8
PT=32
XR=80
ST=96
DEPTH=7
def acc(t,rb): return ACC+(t*2+rb)*4
def st(ks,i): return ST+(ks%DEPTH)*20+4*i
def build(debug=False, out_flags=""):
    stp=Stamps(64,debug)
    name="l3_kernel"
    p=Prog()
    p.I("s_cmp_ge_u32 s2, 256\ns_cbranch_scc1 L3_END")
    stp.stamp(p,"entry")
    p.I("""s_load_dwordx2 s[48:49], s[0:1], 0
s_load_dwordx2 s[50:51], s[0:1], 56
s_load_dwordx2 s[54:55], s[0:1], 72""")
    p.I(f"""v_lshrrev_b32 v1, 6, v0
v_and_b32 v0, 63, v0
s_and_b32 s{S_T1}, s2, 7
s_lshr_b32 s{S_T2}, s2, 3
v_readfirstlane_b32 s{S_W}, v1
s_lshr_b32 s{S_RBP}, s{S_T2}, 2
s_lshl_b32 s{S_RBP}, s{S_RBP}, 3
s_add_u32 s{S_RBP}, s{S_RBP}, s{S_T1}
s_and_b32 s{S_TD}, s{S_T2}, 3
s_mul_i32 s{S_TD}, s{S_TD}, 9
s_mul_i32 s{S_T1}, s{S_W}, 3
s_add_u32 s{S_TD}, s{S_TD}, s{S_T1}
v_lshlrev_b32 v{V_L16}, 4, v0
v_add_u32 v{V_Y1}, 19456, v{V_L16}
v_cmp_gt_u32 vcc, 16, v0
v_mov_b32 v6, 0x10000000
v_mov_b32 v7, 0
v_cndmask_b32 v{V_YN0}, v6, v{V_L16}, vcc
v_cndmask_b32 v{V_YN1}, v6, v{V_Y1}, vcc
s_lshl_b32 s{S_IO}, s{S_TD}, 10
s_add_u32 s{S_IO}, s{S_IO}, {WS_IDFT}
s_mul_i32 s{S_YO}, s{S_RBP}, {2*19456}
s_add_u32 s{S_YO}, s{S_YO}, {WS_Y}
s_mul_i32 s{S_PO}, s{S_RBP}, 36
s_add_u32 s{S_PO}, s{S_PO}, s{S_TD}
s_lshl_b32 s{S_PO}, s{S_PO}, 10
s_add_u32 s{S_PO}, s{S_PO}, {WS_P}
v_and_b32 v6, 15, v0
v_bfe_u32 v7, v0, 4, 1
v_lshlrev_b32 v7, 4, v7
v_add_u32 v6, v6, v7
v_mul_u32_u24 v6, 1152, v6
v_lshrrev_b32 v7, 5, v0
v_lshlrev_b32 v7, 4, v7
v_add_u32 v{V_XA}, v6, v7
s_mul_i32 s{S_XO}, s{S_RBP}, {32*1152}
s_lshl_b32 s{S_T1}, s{S_TD}, 5
s_add_u32 s{S_XO}, s{S_XO}, s{S_T1}
s_waitcnt lgkmcnt(0)""")
    srd(p,12,54,55,WS_SIZE); srd(p,4,48,49,X_BYTES); srd(p,8,50,51,X_BYTES)
    def loads(ks):
        L=[]
        for t in range(3):
            r=st(ks,t); L.append(Ins(f"buffer_load_dwordx4 v[{r}:{r+3}], v{V_L16}, s[12:15], s{S_IO} offen offset:{t*1024}",tag=("s",ks)))
        for rb in range(2):
            r=st(ks,3+rb)
            va=(V_L16,V_Y1)[rb] if ks<18 else (V_YN0,V_YN1)[rb]
            L.append(Ins(f"buffer_load_dwordx4 v[{r}:{r+3}], v{va}, s[12:15], s{S_YO} offen",tag=("s",ks)))
        L.append(Ins(f"s_add_u32 s{S_IO}, s{S_IO}, 36864")); L.append(Ins(f"s_add_u32 s{S_YO}, s{S_YO}, 1024"))
        return L
    for k in range(4):
        for t in range(3):
            r=PT+(k*3+t)*4
            p.I(f"buffer_load_dwordx4 v[{r}:{r+3}], v{V_L16}, s[12:15], s{S_PO} offen offset:{t*1024}",tag=("p",k))
        if k<3: p.I(f"s_add_u32 s{S_PO}, s{S_PO}, 2359296")
    for ks in range(DEPTH-1):
        for i in loads(ks): p.add(i)
    for t in range(3):
        p.I(f"buffer_load_dwordx4 v[{XR+4*t}:{XR+4*t+3}], v{V_XA}, s[4:7], s{S_XO} offen offset:{t*32}",tag="x")
    stp.stamp(p,"issued")
    for k in range(4):
        p.wv(("p",k))
        for t in range(3):
            r=PT+(k*3+t)*4
            for rb in range(2):
                for dd in range(2):
                    src=r+2*rb+dd; a=acc(t,rb)+2*dd
                    if k==0:
                        p.I(f"v_lshlrev_b32 v{a}, 16, v{src}\nv_and_b32 v{a+1}, 0xffff0000, v{src}")
                    else:
                        p.I(f"v_lshlrev_b32 v6, 16, v{src}\nv_and_b32 v7, 0xffff0000, v{src}\nv_add_f32 v{a}, v{a}, v6\nv_add_f32 v{a+1}, v{a+1}, v7")
    p.I("s_nop 1")
    for ks in range(19):
        if ks+DEPTH-1<19:
            for i in loads(ks+DEPTH-1): p.add(i)
        p.wv(("s",ks))
        for t in range(3):
            for rb in range(2):
                a=acc(t,rb); A=st(ks,t); B=st(ks,3+rb)
                p.I(f"v_mfma_f32_16x16x32_bf16 v[{a}:{a+3}], v[{A}:{A+3}], v[{B}:{B+3}], v[{a}:{a+3}]")
    stp.stamp(p,"mfma")
    p.I("s_nop 7\ns_nop 1")
    for t in range(3):
        a0=acc(t,0); a1=acc(t,1)
        for r in range(4): p.I(f"v_permlane16_swap_b32 v{a0+r}, v{a1+r}")
    p.wv("x")
    p.I("s_nop 1")
    for t in range(3):
        a0=acc(t,0); x=XR+4*t; PK=PT+4*t
        for dd in range(4):
            a=a0+2*dd
            p.I(f"""v_lshlrev_b32 v6, 16, v{x+dd}
v_and_b32 v7, 0xffff0000, v{x+dd}
v_add_f32 v{a}, v{a}, v6
v_add_f32 v{a+1}, v{a+1}, v7
v_cvt_pk_bf16_f32 v{PK+dd}, v{a}, v{a+1}""")
        p.I(f"buffer_store_dwordx4 v[{PK}:{PK+3}], v{V_XA}, s[8:11], s{S_XO} offen offset:{t*32} {out_flags}")
    stp.stamp(p,"end")
    stp.store(p,12,f"s_lshl_b32 s45, s2, 2\ns_add_u32 s45, s45, s{S_W}",6,0x80000)
    L=resolve_waits(p.L)
    probs=check_hazards(L,"L3")
    P=Prog()
    P.I(f".globl {name}\n.p2align 8\n.type {name},@function",kind="dir")
    P.label(name); P.L+=L
    P.label("L3_END"); P.I("s_endpgm")
    return P,probs,stp.names,dict(grid=256,block=192,lds=0,vgpr=256,accum=256)
```

```python
import sys, importlib
from common import *
HEADER = """; Kernarg layout (80 bytes, ptrs only, base s[0:1]):
"""
def build(kernels, out, debug=False, **kw):
    import k1
    launches=[]; bodies=[]; descs=[]; probs=[]; stamps={}
    if "l1" in kernels:
        P,pr,names=k1.build(debug=debug, **kw.get("l1",{}))
        bodies.append(P.text()); probs+=pr; stamps["l1"]=names
        launches.append("; @launch kernel=l1_kernel grid=(256,1,1) block=(256,1,1) lds=163840")
        descs.append(kernel_desc("l1_kernel"))
    if "l2" in kernels:
        import k2
        P,pr,names=k2.build(debug=debug, **kw.get("l2",{}))
        bodies.append(P.text()); probs+=pr; stamps["l2"]=names
        launches.append("; @launch kernel=l2_kernel grid=(256,1,1) block=(256,1,1) lds=163840")
        descs.append(kernel_desc("l2_kernel"))
    if "l3" in kernels:
        import k3
        P,pr,names,cfg=k3.build(debug=debug, **kw.get("l3",{}))
        bodies.append(P.text()); probs+=pr; stamps["l3"]=names
        launches.append(f"; @launch kernel=l3_kernel grid=({cfg['grid']},1,1) block=({cfg['block']},1,1) lds={cfg['lds']}")
        descs.append(kernel_desc("l3_kernel",vgpr=cfg['vgpr'],accum=cfg['accum']))
    txt=HEADER+"\n".join(launches)+"\n"
    txt+='.amdgcn_target "amdgcn-amd-amdhsa--gfx950"\n.text\n'
    if "l1" not in kernels: txt+="L1_START:\n"
    txt+="".join(bodies)
    txt+="CODE_END:\n    s_endpgm\n"
    txt+='.section .rodata,"a"\n'+"".join(descs)
    open(out,"w").write(txt)
    for x in probs: print("HAZARD:",x)
    return stamps
if __name__=="__main__":
    ks=sys.argv[2].split(",")
    dbg = len(sys.argv)>3 and sys.argv[3]=="dbg"
    kw={}
    for a in sys.argv[4:]:
        k,v=a.split("=",1); kn,opt=k.split(".")
        kw.setdefault(kn,{})[opt]=eval(v)
    st=build(ks, sys.argv[1], debug=dbg, **kw)
    print(st)
```
